```python
import torch

def _softmax(x, axis=-1):
    return torch.softmax(x, dim=axis)
def _gelu(x):
    return torch.nn.functional.gelu(x, approximate="tanh")
def _silu(x):
    return torch.nn.functional.silu(x)
def _sigmoid(x):
    return torch.sigmoid(x)
def _layernorm(x, axis=-1, eps=1e-5):
    m = x.mean(dim=axis, keepdim=True)
    v = x.var(dim=axis, keepdim=True, unbiased=False)
    return (x - m) / torch.sqrt(v + eps)
def _scatter_add(tgt, idx, src, axis=0):
    return tgt.clone().index_add_(axis, idx, src)
def _segment_sum(src, seg, n):
    out = torch.zeros((n,) + src.shape[1:], dtype=src.dtype)
    return out.index_add_(0, seg, src)
def _pad(x, pw):
    flat = tuple(v for pair in reversed(pw) for v in pair)
    return torch.nn.functional.pad(x, flat)

kernel_name = 'parallel_sum__linear_kernel_hedgehog__glu_gated_reglu__prompt'

def setup_inputs():

    _w = (lambda a: (lambda t: t.to(torch.bfloat16) if t.is_floating_point() else t)(torch.as_tensor(a)))
    def _A_setup():
        B, S, D, H = 1, 2048, 512, 32
        Dh = D // H
        return {
            "x": _w((lambda *s: torch.randn(*s, dtype=torch.bfloat16) * 0.05)(B, S, D)),
            "wqkv": _w((lambda *s: torch.randn(*s, dtype=torch.bfloat16) * 0.2)(D, 3 * D)),
            "w_phi": _w((lambda *s: torch.randn(*s, dtype=torch.bfloat16) * 0.2)(H, Dh, Dh) * (Dh ** -0.5)),
            "wo": _w((lambda *s: torch.randn(*s, dtype=torch.bfloat16) * 0.05)(D, D)),
        }
    _A_in = _A_setup()

    def _B_setup():
        B, S, D, F = 1, 2048, 512, 1792
        return {
            "x": _w((lambda *s: torch.randn(*s, dtype=torch.bfloat16) * 0.05)(B, S, D)),
            "W_gate": _w((lambda *s: torch.randn(*s, dtype=torch.bfloat16) * 0.4)(D, F) * (2.0 / D) ** 0.5),
            "W_up": _w((lambda *s: torch.randn(*s, dtype=torch.bfloat16) * 0.4)(D, F) * (2.0 / D) ** 0.5),
            "W_down": _w((lambda *s: torch.randn(*s, dtype=torch.bfloat16) * 0.4)(F, D) * (1.0 / F) ** 0.5),
        }
    _B_in = _B_setup()

    return {
        "A_x": _A_in["x"],
        "A_wqkv": _A_in["wqkv"],
        "A_w_phi": _A_in["w_phi"],
        "A_wo": _A_in["wo"],
        "B_x": _B_in["x"],
        "B_W_gate": _B_in["W_gate"],
        "B_W_up": _B_in["W_up"],
        "B_W_down": _B_in["W_down"],
    }

def reference(A_x, A_wqkv, A_w_phi, A_wo, B_x, B_W_gate, B_W_up, B_W_down):
    def _A_ref(x, wqkv, w_phi, wo):
        B, S, D = x.shape
        H = 32; Dh = D // H
        qkv = (lambda x, *d: x.permute(*d))((x @ wqkv).reshape(B, S, 3, H, Dh), 2, 0, 3, 1, 4)
        q, k, v = qkv[0], qkv[1], qkv[2]
        pq = torch.einsum("bhsd,hdf->bhsf", q, w_phi)
        pk = torch.einsum("bhsd,hdf->bhsf", k, w_phi)
        phi_q = torch.concatenate([_softmax(pq, axis=-1), _softmax(-pq, axis=-1)], axis=-1)
        phi_k = torch.concatenate([_softmax(pk, axis=-1), _softmax(-pk, axis=-1)], axis=-1)
        kv = torch.einsum("bhsf,bhsd->bhfd", phi_k, v)
        z  = torch.einsum("bhsf->bhf", phi_k)
        num = torch.einsum("bhqf,bhfd->bhqd", phi_q, kv)
        den = torch.einsum("bhqf,bhf->bhq", phi_q, z)[..., None] + 1e-6
        o = num / den
        return (lambda x, *d: x.permute(*d))(o, 0, 2, 1, 3).reshape(B, S, D) @ wo

    def _B_ref(x, W_gate, W_up, W_down):
        gate = torch.einsum("bsd,df->bsf", x, W_gate)
        up = torch.einsum("bsd,df->bsf", x, W_up)
        gate = gate * (lambda x, dt: x.to(dt))(gate > 0, gate.dtype)
        h = gate * up
        return torch.einsum("bsf,fd->bsd", h, W_down)

    x = A_x
    xn = _layernorm(x, axis=-1)
    return x + _A_ref(xn, A_wqkv, A_w_phi, A_wo) + _B_ref(xn, B_W_gate, B_W_up, B_W_down)
```

```python
from gen import *

LOG2E = 0x3fb8aa3b

ACC, AF, BF, STA, STB, BADDR = 64, (128, 144), (160, 176), 192, 208, 224
V_AOFF, V_AW, V_BW, V_AR, V_BR = 232, 233, 234, 235, 237


def acc(j, i):
    return ACC + 4 * (4 * j + i)


def k1_loads(a, s):
    for i in range(4):
        a(f"buffer_load_dwordx4 v[{STA+4*i}:{STA+4*i+3}], v{V_AOFF}, s[16:19], s{24+i} offen offset:{s*128}")
    for i in range(4):
        a(f"global_load_dwordx4 v[{STB+4*i}:{STB+4*i+3}], v[{BADDR+2*i}:{BADDR+2*i+1}], off")
    for i in range(4):
        a(f"""
v_add_co_u32 v{BADDR+2*i}, vcc, s31, v{BADDR+2*i}
v_addc_co_u32 v{BADDR+2*i+1}, vcc, 0, v{BADDR+2*i+1}, vcc""")


def k1_writes(a, b):
    for i in range(4):
        a(f"ds_write_b128 v{V_AW}, v[{STA+4*i}:{STA+4*i+3}] offset:{b*16384+i*4096}")
    for i in range(4):
        a(f"ds_write_b128 v{V_BW}, v[{STB+4*i}:{STB+4*i+3}] offset:{b*16384+i*4096}")


def k1_stage(a, s, kvmode):
    b = s % 2
    for ks in range(2):
        for i in range(4):
            a(f"ds_read_b128 v[{AF[ks]+4*i}:{AF[ks]+4*i+3}], v{V_AR+ks} offset:{b*16384+i*2048}")
        for j in range(4):
            for half in range(2):
                a(f"ds_read_b64_tr_b16 v[{BF[ks]+4*j+2*half}:{BF[ks]+4*j+2*half+1}], v{V_BR+j} offset:{b*16384+ks*8192+half*1024}")
    for ks in range(2):
        a(f"s_waitcnt lgkmcnt({12 if ks == 0 else 0})")
        for j in range(4):
            for i in range(4):
                c = acc(j, i)
                cin = "0" if (s == 0 and ks == 0) else f"v[{c}:{c+3}]"
                af = f"v[{AF[ks]+4*i}:{AF[ks]+4*i+3}]"
                bf = f"v[{BF[ks]+4*j}:{BF[ks]+4*j+3}]"
                if kvmode and (j % 2 == 1):
                    a(f"v_mfma_f32_16x16x32_bf16 v[{c}:{c+3}], {af}, {bf}, {cin}")
                else:
                    a(f"v_mfma_f32_16x16x32_bf16 v[{c}:{c+3}], {bf}, {af}, {cin}")
    if s < 7:
        a("s_waitcnt vmcnt(0)")
        k1_writes(a, (s + 1) % 2)
        a("s_waitcnt lgkmcnt(0)")
        if s < 6:
            k1_loads(a, s + 2)
    a("s_barrier")


def round2(a, ra, rb, tmp):
    a(f"""
v_cvt_pk_bf16_f32 v{tmp}, v{ra}, v{rb}
v_lshlrev_b32 v{ra}, 16, v{tmp}
v_and_b32 v{rb}, 0xffff0000, v{tmp}""")


def softmax4(a, groups, outs):
    n = len(groups)
    MX, MN, T = 32, 36, 40
    for t, p in enumerate(groups):
        a(f"""
v_max_f32 v{MX+t}, v{p}, v{p+1}
v_max3_f32 v{MX+t}, v{MX+t}, v{p+2}, v{p+3}
v_min_f32 v{MN+t}, v{p}, v{p+1}
v_min3_f32 v{MN+t}, v{MN+t}, v{p+2}, v{p+3}""")
    for ad in (20, 21):
        for t in range(n):
            a(f"ds_bpermute_b32 v{T+t}, v{ad}, v{MX+t}")
            a(f"ds_bpermute_b32 v{T+4+t}, v{ad}, v{MN+t}")
        a("s_waitcnt lgkmcnt(0)")
        for t in range(n):
            a(f"v_max_f32 v{MX+t}, v{MX+t}, v{T+t}")
            a(f"v_min_f32 v{MN+t}, v{MN+t}, v{T+4+t}")
    a(f"s_mov_b32 s40, {LOG2E}")
    for t, p in enumerate(groups):
        o = outs[t]
        for r in range(4):
            a(f"""
v_sub_f32 v{o+r}, v{MN+t}, v{p+r}
v_mul_f32 v{o+r}, s40, v{o+r}
v_exp_f32 v{o+r}, v{o+r}
v_sub_f32 v{p+r}, v{p+r}, v{MX+t}
v_mul_f32 v{p+r}, s40, v{p+r}
v_exp_f32 v{p+r}, v{p+r}""")
    a("s_nop 0")
    for t, p in enumerate(groups):
        o = outs[t]
        a(f"""
v_add_f32 v{MX+t}, v{p}, v{p+1}
v_add_f32 v{MX+t}, v{MX+t}, v{p+2}
v_add_f32 v{MX+t}, v{MX+t}, v{p+3}
v_add_f32 v{MN+t}, v{o}, v{o+1}
v_add_f32 v{MN+t}, v{MN+t}, v{o+2}
v_add_f32 v{MN+t}, v{MN+t}, v{o+3}""")
    for ad in (20, 21):
        for t in range(n):
            a(f"ds_bpermute_b32 v{T+t}, v{ad}, v{MX+t}")
            a(f"ds_bpermute_b32 v{T+4+t}, v{ad}, v{MN+t}")
        a("s_waitcnt lgkmcnt(0)")
        for t in range(n):
            a(f"v_add_f32 v{MX+t}, v{MX+t}, v{T+t}")
            a(f"v_add_f32 v{MN+t}, v{MN+t}, v{T+4+t}")
    for t in range(n):
        a(f"""
v_rcp_f32 v{MX+t}, v{MX+t}
v_rcp_f32 v{MN+t}, v{MN+t}""")
    a("s_nop 0")
    for t, p in enumerate(groups):
        o = outs[t]
        for r in range(4):
            a(f"""
v_mul_f32 v{p+r}, v{p+r}, v{MX+t}
v_mul_f32 v{o+r}, v{o+r}, v{MN+t}""")
        a(f"""
v_cvt_pk_bf16_f32 v{o+2}, v{o+2}, v{o+3}
v_cvt_pk_bf16_f32 v{o+3}, v{o}, v{o+1}
v_cvt_pk_bf16_f32 v{o}, v{p}, v{p+1}
v_cvt_pk_bf16_f32 v{o+1}, v{p+2}, v{p+3}""")
        a(f"""
v_mov_b32 v3, v{o+2}
v_mov_b32 v{o+2}, v{o+3}
v_mov_b32 v{o+3}, v3""")


def load_wfrag(a, dst, head_sgpr_bytes):
    for j in range(4):
        a(f"buffer_load_ushort v{3+j}, v22, s[20:23], s{head_sgpr_bytes} offen offset:{32*j}")
    a("s_waitcnt vmcnt(0)")
    a(f"""
v_lshl_or_b32 v{dst}, v4, 16, v3
v_lshl_or_b32 v{dst+1}, v6, 16, v5""")


def gen_k1(a):
    kernel_begin(a, "gemm1_kernel")
    end = "K1_END"
    a(f"""
s_cmp_ge_u32 s2, 640
s_cbranch_scc1 {end}
s_load_dwordx4 s[4:7], s[0:1], 8
s_load_dwordx4 s[8:11], s[0:1], 40
s_load_dwordx2 s[12:13], s[0:1], 80
s_and_b32 s28, s2, 15
s_lshr_b32 s29, s2, 4
s_mov_b32 s24, 0
s_mov_b32 s25, 32768
s_mov_b32 s26, 65536
s_mov_b32 s27, 98304
v_and_b32 v1, 63, v0
v_lshrrev_b32 v2, 6, v0
s_waitcnt lgkmcnt(0)""")
    srd(a, 16, 12, WS_END)
    srd(a, 20, 6, 16384)
    a("""
s_lshl_b32 s32, s28, 17
v_lshrrev_b32 v3, 3, v0
v_lshlrev_b32 v3, 10, v3
v_and_b32 v4, 7, v0
v_lshlrev_b32 v5, 4, v4
v_add_u32 v3, v3, v5
v_add_u32 v232, s32, v3""")
    a("""
v_lshrrev_b32 v3, 3, v0
v_and_b32 v5, 7, v3
v_xor_b32 v5, v5, v4
v_lshlrev_b32 v5, 4, v5
v_lshlrev_b32 v3, 7, v3
v_add_u32 v233, v3, v5""")
    a("""
v_lshrrev_b32 v3, 4, v0
v_and_b32 v4, 15, v0
v_and_b32 v5, 3, v3
v_lshrrev_b32 v6, 3, v3
v_and_b32 v6, 1, v6
v_lshl_or_b32 v5, v6, 2, v5
v_lshrrev_b32 v6, 1, v4
v_xor_b32 v5, v5, v6
v_lshlrev_b32 v5, 5, v5
v_and_b32 v6, 1, v4
v_lshlrev_b32 v6, 4, v6
v_lshlrev_b32 v7, 8, v3
v_add3_u32 v234, v5, v6, v7
v_add_u32 v234, 32768, v234""")
    a("""
v_lshrrev_b32 v3, 1, v2
v_lshlrev_b32 v3, 6, v3
v_and_b32 v4, 15, v1
v_add_u32 v3, v3, v4
v_lshlrev_b32 v3, 7, v3
v_lshrrev_b32 v5, 4, v1
v_and_b32 v6, 7, v1
v_xor_b32 v7, v5, v6
v_lshlrev_b32 v7, 4, v7
v_add_u32 v235, v3, v7
v_add_u32 v5, 4, v5
v_xor_b32 v7, v5, v6
v_lshlrev_b32 v7, 4, v7
v_add_u32 v236, v3, v7""")
    a("""
v_and_b32 v3, 15, v1
v_lshrrev_b32 v4, 2, v3
v_and_b32 v5, 3, v3
v_lshrrev_b32 v6, 4, v1
v_lshlrev_b32 v7, 3, v6
v_add_u32 v7, v7, v4
v_lshlrev_b32 v7, 8, v7
v_lshlrev_b32 v5, 3, v5
v_add_u32 v7, v7, v5
v_add_u32 v7, 32768, v7
v_and_b32 v6, 1, v6
v_lshl_or_b32 v4, v6, 2, v4
v_and_b32 v8, 1, v2
v_lshlrev_b32 v8, 2, v8""")
    for j in range(4):
        a(f"""
v_add_u32 v9, {j}, v8
v_xor_b32 v9, v9, v4
v_lshlrev_b32 v9, 5, v9
v_add_u32 v{V_BR+j}, v7, v9""")
    a("""
v_xor_b32 v20, 16, v1
v_lshlrev_b32 v20, 2, v20
v_xor_b32 v21, 32, v1
v_lshlrev_b32 v21, 2, v21
v_lshrrev_b32 v22, 4, v1
v_lshlrev_b32 v22, 7, v22
v_and_b32 v3, 15, v1
v_lshl_add_u32 v22, v3, 1, v22""")
    lkv, lq, lgu, lcommon = "K1_KV", "K1_Q", "K1_GU", "K1_COMMON"
    a(f"""
v_and_b32 v4, 15, v0
v_lshrrev_b32 v5, 1, v4
v_and_b32 v6, 1, v4
s_cmp_lt_u32 s29, 8
s_cbranch_scc1 {lkv}
s_cmp_lt_u32 s29, 12
s_cbranch_scc1 {lq}""")
    a(f"""
s_sub_u32 s33, s29, 12
s_lshl_b32 s34, s33, 7
v_lshrrev_b32 v7, 2, v5
v_lshlrev_b32 v7, 6, v7
v_and_b32 v8, 1, v5
v_lshlrev_b32 v8, 5, v8
v_lshlrev_b32 v9, 4, v6
v_add3_u32 v10, v7, v8, v9
v_add_u32 v10, s34, v10
v_and_b32 v7, 2, v5
v_cmp_ne_u32 vcc, 0, v7
v_mov_b32 v11, s8
v_mov_b32 v12, s9
v_mov_b32 v13, s10
v_mov_b32 v14, s11
v_cndmask_b32 v11, v11, v13, vcc
v_cndmask_b32 v12, v12, v14, vcc
s_mov_b32 s30, 3584
s_branch {lcommon}""")
    a.label(lq)
    a(f"""
s_sub_u32 s33, s29, 8
s_lshl_b32 s34, s33, 8
v_lshlrev_b32 v10, 4, v4
v_add_u32 v10, s34, v10
v_mov_b32 v11, s4
v_mov_b32 v12, s5
s_mov_b32 s30, 3072
s_branch {lcommon}""")
    a.label(lkv)
    a(f"""
s_lshl_b32 s34, s29, 7
s_add_u32 s34, s34, 1024
v_and_b32 v7, 1, v5
v_lshlrev_b32 v7, 10, v7
v_lshrrev_b32 v8, 1, v5
v_lshlrev_b32 v8, 5, v8
v_lshlrev_b32 v9, 4, v6
v_add3_u32 v10, v7, v8, v9
v_add_u32 v10, s34, v10
v_mov_b32 v11, s4
v_mov_b32 v12, s5
s_mov_b32 s30, 3072""")
    a.label(lcommon)
    a("""
s_lshl_b32 s31, s30, 6
v_lshrrev_b32 v3, 4, v0
v_mul_lo_u32 v3, v3, s30
v_add_u32 v3, v3, v10
s_lshl_b32 s35, s30, 4""")
    for i in range(4):
        a(f"""
v_add_co_u32 v{BADDR+2*i}, vcc, v11, v3
v_addc_co_u32 v{BADDR+2*i+1}, vcc, 0, v12, vcc
v_add_u32 v3, s35, v3""")
    k1_loads(a, 0)
    a("s_waitcnt vmcnt(0)")
    k1_writes(a, 0)
    a("s_waitcnt lgkmcnt(0)")
    k1_loads(a, 1)
    a("s_barrier")
    lloop_kv = "K1_LOOP_KV"
    a(f"""
s_cmp_lt_u32 s29, 8
s_cbranch_scc1 {lloop_kv}""")
    for s in range(8):
        k1_stage(a, s, False)
    a("""
s_nop 7
s_nop 7""")
    lepi_q = "K1_EPI_Q"
    a(f"""
s_cmp_lt_u32 s29, 12
s_cbranch_scc1 {lepi_q}""")
    a(f"""
v_lshrrev_b32 v3, 1, v2
v_lshlrev_b32 v3, 6, v3
v_and_b32 v4, 15, v1
v_add_u32 v3, v3, v4
s_lshl_b32 s32, s28, 7
v_add_u32 v3, s32, v3
s_mov_b32 s36, 3584
v_mul_lo_u32 v3, v3, s36
v_and_b32 v4, 1, v2
v_lshlrev_b32 v4, 6, v4
v_lshrrev_b32 v5, 4, v1
v_lshlrev_b32 v5, 3, v5
v_add3_u32 v3, v3, v4, v5
s_lshl_b32 s32, s33, 7
s_add_u32 s32, s32, {H_OFF}""")
    for i in range(4):
        for jj in range(2):
            g, u = acc(jj, i), acc(jj + 2, i)
            round2(a, g, g + 1, 5)
            round2(a, g + 2, g + 3, 5)
            round2(a, u, u + 1, 5)
            round2(a, u + 2, u + 3, 5)
            for r in range(4):
                a(f"""
v_max_f32 v{g+r}, 0, v{g+r}
v_mul_f32 v{g+r}, v{g+r}, v{u+r}""")
            a(f"""
v_cvt_pk_bf16_f32 v6, v{g}, v{g+1}
v_cvt_pk_bf16_f32 v7, v{g+2}, v{g+3}
buffer_store_dwordx2 v[6:7], v3, s[16:19], s32 offen offset:{32*jj}""")
        if i < 3:
            a(f"v_add_u32 v3, {16*3584}, v3")
    a(f"s_branch {end}")
    a.label(lepi_q)
    a(f"""
v_lshrrev_b32 v3, 1, v2
v_lshlrev_b32 v3, 6, v3
v_and_b32 v4, 15, v1
v_add_u32 v3, v3, v4
s_lshl_b32 s32, s28, 7
v_add_u32 v3, s32, v3
v_lshlrev_b32 v3, 11, v3
v_and_b32 v4, 1, v2
v_lshlrev_b32 v4, 8, v4
v_lshrrev_b32 v5, 4, v1
v_lshlrev_b32 v5, 4, v5
v_add3_u32 v23, v3, v4, v5
s_lshl_b32 s32, s33, 9
s_add_u32 s32, s32, {PHIQ_OFF}
v_readfirstlane_b32 s37, v2
s_and_b32 s37, s37, 1
s_lshl_b32 s37, s37, 2
s_lshl_b32 s38, s33, 3
s_add_u32 s37, s37, s38""")
    for j in range(4):
        a(f"""
s_add_u32 s38, s37, {j}
s_lshl_b32 s38, s38, 9""")
        load_wfrag(a, 24, 38)
        groups = []
        for i in range(4):
            c = acc(j, i)
            a(f"""
v_cvt_pk_bf16_f32 v26, v{c}, v{c+1}
v_cvt_pk_bf16_f32 v27, v{c+2}, v{c+3}
s_nop 1
v_mfma_f32_16x16x16_bf16 v[{c}:{c+3}], v[24:25], v[26:27], 0""")
            groups.append(c)
        a("""
s_nop 7
s_nop 7""")
        for c in groups:
            round2(a, c, c + 1, 5)
            round2(a, c + 2, c + 3, 5)
        outs = [48 + 4 * i for i in range(4)]
        softmax4(a, groups, outs)
        for i in range(4):
            o = outs[i]
            a(f"buffer_store_dwordx4 v[{o}:{o+3}], v23, s[16:19], s32 offen offset:{64*j}")
            if i < 3:
                a(f"v_add_u32 v23, {16*2048}, v23")
        a(f"v_subrev_u32 v23, {3*16*2048}, v23")
        a("s_nop 1")
    a(f"s_branch {end}")
    a.label(lloop_kv)
    for s in range(8):
        k1_stage(a, s, True)
    a("""
s_nop 7
s_nop 7""")
    a(f"""
v_lshlrev_b32 v23, 12, v2
v_and_b32 v3, 15, v1
v_lshlrev_b32 v4, 6, v3
v_lshrrev_b32 v5, 4, v1
v_lshlrev_b32 v6, 4, v5
v_add3_u32 v23, v23, v4, v6
v_lshrrev_b32 v4, 2, v3
v_and_b32 v6, 3, v3
v_lshlrev_b32 v7, 2, v5
v_add_u32 v7, v7, v4
v_lshlrev_b32 v7, 6, v7
v_lshlrev_b32 v6, 3, v6
v_lshlrev_b32 v28, 12, v2
v_add3_u32 v28, v28, v7, v6
v_readfirstlane_b32 s37, v2
s_and_b32 s37, s37, 1
s_lshl_b32 s37, s37, 1
s_lshl_b32 s38, s29, 2
s_add_u32 s37, s37, s38""")
    a("""
v_lshlrev_b32 v29, 7, v3
v_lshlrev_b32 v4, 4, v5
v_add_u32 v29, v29, v4
v_lshlrev_b32 v30, 4, v5
v_mov_b32 v19, v3
v_mov_b32 v31, 0x3f803f80""")
    for hh in range(2):
        a(f"""
s_add_u32 s38, s37, {hh}
s_mul_i32 s39, s38, 2176
s_add_u32 s39, s39, {KVZ_OFF}
s_lshl_b32 s38, s38, 9""")
        load_wfrag(a, 24, 38)
        groups = []
        for i in range(4):
            c = acc(2 * hh, i)
            a(f"""
v_cvt_pk_bf16_f32 v26, v{c}, v{c+1}
v_cvt_pk_bf16_f32 v27, v{c+2}, v{c+3}
s_nop 1
v_mfma_f32_16x16x16_bf16 v[{c}:{c+3}], v[24:25], v[26:27], 0""")
            groups.append(c)
        a("""
s_nop 7
s_nop 7""")
        for c in groups:
            round2(a, c, c + 1, 5)
            round2(a, c + 2, c + 3, 5)
        outs = [48 + 4 * i for i in range(4)]
        softmax4(a, groups, outs)
        for i in range(4):
            o = outs[i]
            a(f"ds_write_b128 v23, v[{o}:{o+3}] offset:{i*1024}")
        for p in range(2):
            for t in range(2):
                c = acc(2 * hh + 1, 2 * p + t)
                a(f"""
v_cvt_pk_bf16_f32 v{128+4*p+2*t}, v{c}, v{c+1}
v_cvt_pk_bf16_f32 v{128+4*p+2*t+1}, v{c+2}, v{c+3}""")
        a("s_waitcnt lgkmcnt(0)")
        for fh in range(2):
            for p in range(2):
                for t in range(2):
                    a(f"ds_read_b64_tr_b16 v[{136+8*fh+4*p+2*t}:{136+8*fh+4*p+2*t+1}], v28 offset:{(32*p+16*t)*64+fh*32}")
        a("s_waitcnt lgkmcnt(0)")
        for fh in range(2):
            for p in range(2):
                cin = "0" if p == 0 else f"v[{152+4*fh}:{152+4*fh+3}]"
                a(f"v_mfma_f32_16x16x32_bf16 v[{152+4*fh}:{152+4*fh+3}], v[{136+8*fh+4*p}:{136+8*fh+4*p+3}], v[{128+4*p}:{128+4*p+3}], {cin}")
        a("""
v_mov_b32 v168, v31
v_mov_b32 v169, v31
v_mov_b32 v170, v31
v_mov_b32 v171, v31
s_nop 1""")
        for fh in range(2):
            for p in range(2):
                cin = "0" if p == 0 else f"v[{160+4*fh}:{160+4*fh+3}]"
                a(f"v_mfma_f32_16x16x32_bf16 v[{160+4*fh}:{160+4*fh+3}], v[{136+8*fh+4*p}:{136+8*fh+4*p+3}], v[168:171], {cin}")
        a("""
s_nop 7
s_nop 7""")
        for fh in range(2):
            for r in range(4):
                a(f"buffer_atomic_add_f32 v{152+4*fh+r}, v29, s[16:19], s39 offen offset:{64*fh+4*r}")
        a("""
v_cmp_eq_u32 vcc, 0, v19
s_and_saveexec_b64 s[42:43], vcc""")
        for fh in range(2):
            for r in range(4):
                a(f"buffer_atomic_add_f32 v{160+4*fh+r}, v30, s[16:19], s39 offen offset:{2048+64*fh+4*r}")
        a("s_mov_b64 exec, s[42:43]")
        a("s_waitcnt vmcnt(0)")
    a.label(end)
    a("s_endpgm")


def gen_k2(a):
    kernel_begin(a, "gemm2_kernel")
    end = "K2_END"
    ACA, ACB = 64, 80
    AF2, BF2 = (96, 104), (112, 120)
    SA, SB = 128, 136
    VAO, VBO, VAW, VBW, VAR, VBR, VOW = 144, 145, 146, 147, 148, 150, 152
    a(f"""
s_cmp_ge_u32 s2, 256
s_cbranch_scc1 {end}
s_load_dwordx2 s[4:5], s[0:1], 0
s_load_dwordx2 s[6:7], s[0:1], 24
s_load_dwordx4 s[8:11], s[0:1], 56
s_load_dwordx2 s[12:13], s[0:1], 80
s_and_b32 s36, s2, 31
s_lshr_b32 s37, s2, 5
v_and_b32 v1, 63, v0
v_lshrrev_b32 v2, 6, v0
s_waitcnt lgkmcnt(0)""")
    srd(a, 16, 12, WS_END)
    srd(a, 20, 6, 524288)
    srd(a, 24, 8, 1835008)
    srd(a, 28, 4, 2097152)
    srd(a, 32, 10, 2097152)
    a(f"""
v_and_b32 v3, 15, v1
v_lshrrev_b32 v4, 4, v1
; B voffset = (t/8)*1024 + n0*2 + (t%8)*16
v_lshrrev_b32 v5, 3, v0
v_and_b32 v6, 7, v0
v_lshlrev_b32 v7, 10, v5
v_lshlrev_b32 v8, 4, v6
s_lshl_b32 s38, s37, 7
v_add3_u32 v{VBO}, v7, v8, s38
; A(h) voffset = (m0 + t/8)*3584 + (t%8)*16
s_lshl_b32 s38, s36, 6
v_add_u32 v7, s38, v5
s_mov_b32 s39, 3584
v_mul_lo_u32 v7, v7, s39
v_add_u32 v{VAO}, v7, v8
v_and_b32 v7, 7, v5
v_xor_b32 v7, v7, v6
v_lshlrev_b32 v7, 4, v7
v_lshl_add_u32 v{VAW}, v5, 7, v7
v_add_u32 v{VAW}, 65536, v{VAW}
v_lshrrev_b32 v7, 1, v5
v_and_b32 v7, 1, v7
v_lshrrev_b32 v8, 3, v5
v_and_b32 v8, 1, v8
v_lshl_or_b32 v7, v8, 1, v7
v_lshrrev_b32 v8, 1, v6
v_xor_b32 v7, v7, v8
v_lshlrev_b32 v7, 5, v7
v_and_b32 v8, 1, v6
v_lshlrev_b32 v8, 4, v8
v_lshlrev_b32 v9, 7, v5
v_add3_u32 v{VBW}, v7, v8, v9
v_add_u32 v{VBW}, 81920, v{VBW}
; A read: row = wm*32 + l%16
v_lshrrev_b32 v5, 1, v2
v_lshlrev_b32 v5, 5, v5
v_add_u32 v5, v5, v3
v_lshlrev_b32 v5, 7, v5
v_and_b32 v6, 7, v1
v_xor_b32 v7, v4, v6
v_lshl_add_u32 v{VAR}, v7, 4, v5
v_add_u32 v7, 4, v4
v_xor_b32 v7, v7, v6
v_lshl_add_u32 v{VAR+1}, v7, 4, v5
v_add_u32 v156, 65536, v{VAR}
v_add_u32 v157, 65536, v{VAR+1}
v_lshrrev_b32 v5, 2, v3
v_and_b32 v6, 3, v3
v_lshlrev_b32 v7, 3, v4
v_add_u32 v7, v7, v5
v_lshlrev_b32 v7, 7, v7
v_lshl_add_u32 v7, v6, 3, v7
v_add_u32 v7, 81920, v7
v_lshrrev_b32 v8, 1, v5
v_and_b32 v9, 1, v4
v_lshl_or_b32 v8, v9, 1, v8
v_and_b32 v9, 1, v2
v_lshlrev_b32 v9, 1, v9""")
    for j in range(2):
        a(f"""
v_add_u32 v10, {j}, v9
v_xor_b32 v10, v10, v8
v_lshlrev_b32 v10, 5, v10
v_add_u32 v{VBR+j}, v7, v10""")
    for hc in range(4):
        a(f"""
v_lshrrev_b32 v5, 1, v4
v_add_u32 v5, {2*hc}, v5
v_and_b32 v6, 7, v3
v_xor_b32 v5, v5, v6
v_lshlrev_b32 v5, 4, v5
v_and_b32 v6, 1, v4
v_lshlrev_b32 v6, 3, v6
v_lshlrev_b32 v7, 7, v3
v_add3_u32 v{VOW+hc}, v5, v6, v7""")

    def bloads(s):
        for i in range(2):
            if s < 8:
                a(f"s_mov_b32 s40, {s*65536+i*32768}\nbuffer_load_dwordx4 v[{SB+4*i}:{SB+4*i+3}], v{VBO}, s[20:23], s40 offen")
            else:
                a(f"s_mov_b32 s40, {(s-8)*65536+i*32768}\nbuffer_load_dwordx4 v[{SB+4*i}:{SB+4*i+3}], v{VBO}, s[24:27], s40 offen")
        if s >= 8:
            for i in range(2):
                a(f"s_mov_b32 s40, {H_OFF+i*114688}\nbuffer_load_dwordx4 v[{SA+4*i}:{SA+4*i+3}], v{VAO}, s[16:19], s40 offen offset:{(s-8)*128}")

    def bwrites(s):
        b = s % 2
        for i in range(2):
            a(f"ds_write_b128 v{VBW}, v[{SB+4*i}:{SB+4*i+3}] offset:{b*8192+i*4096}")
        if s >= 8:
            for i in range(2):
                a(f"ds_write_b128 v{VAW}, v[{SA+4*i}:{SA+4*i+3}] offset:{b*8192+i*4096}")

    bloads(0)
    a(f"""
s_lshl_b32 s38, s36, 6
v_add_u32 v20, s38, v3
v_lshlrev_b32 v20, 11, v20
v_lshl_add_u32 v20, v4, 4, v20
v_lshlrev_b32 v21, 7, v3
v_lshl_add_u32 v21, v4, 5, v21
v_lshlrev_b32 v22, 5, v4
v_readfirstlane_b32 s41, v2
s_lshl_b32 s41, s41, 3
s_mov_b32 s45, 0x358637bd""")
    for hl in range(8):
        a(f"""
s_add_u32 s42, s41, {hl}
s_mul_i32 s43, s42, 2176
s_add_u32 s43, s43, {KVZ_OFF}
s_lshl_b32 s44, s42, 6
s_add_u32 s44, s44, {PHIQ_OFF}
buffer_load_dwordx4 v[24:27], v21, s[16:19], s43 offen
buffer_load_dwordx4 v[28:31], v21, s[16:19], s43 offen offset:16
buffer_load_dwordx4 v[32:35], v22, s[16:19], s43 offen offset:2048
buffer_load_dwordx4 v[36:39], v22, s[16:19], s43 offen offset:2064""")
        for i in range(4):
            a(f"""
s_mov_b32 s46, {i*16*2048}
s_add_u32 s46, s46, s44
buffer_load_dwordx4 v[{40+4*i}:{43+4*i}], v20, s[16:19], s46 offen""")
        a("s_waitcnt vmcnt(4)")
        a("""
v_cvt_pk_bf16_f32 v24, v24, v25
v_cvt_pk_bf16_f32 v25, v26, v27
v_cvt_pk_bf16_f32 v26, v28, v29
v_cvt_pk_bf16_f32 v27, v30, v31
v_cvt_pk_bf16_f32 v32, v32, v33
v_cvt_pk_bf16_f32 v33, v34, v35
v_cvt_pk_bf16_f32 v34, v36, v37
v_cvt_pk_bf16_f32 v35, v38, v39
s_waitcnt vmcnt(0)
s_nop 1""")
        for i in range(4):
            a(f"""
v_mfma_f32_16x16x32_bf16 v[{96+4*i}:{99+4*i}], v[24:27], v[{40+4*i}:{43+4*i}], 0
v_mfma_f32_16x16x32_bf16 v[{112+4*i}:{115+4*i}], v[32:35], v[{40+4*i}:{43+4*i}], 0""")
        a("s_nop 7\ns_nop 7")
        for i in range(4):
            n, d = 96 + 4 * i, 112 + 4 * i
            a(f"""
v_cvt_pk_bf16_f32 v5, v{d}, v{d}
v_and_b32 v5, 0xffff0000, v5
v_add_f32 v5, s45, v5
v_cvt_pk_bf16_f32 v5, v5, v5
v_and_b32 v5, 0xffff0000, v5
v_rcp_f32 v5, v5""")
            round2(a, n, n + 1, 6)
            round2(a, n + 2, n + 3, 6)
            a(f"""
v_mul_f32 v{n}, v{n}, v5
v_mul_f32 v{n+1}, v{n+1}, v5
v_mul_f32 v{n+2}, v{n+2}, v5
v_mul_f32 v{n+3}, v{n+3}, v5
v_cvt_pk_bf16_f32 v6, v{n}, v{n+1}
v_cvt_pk_bf16_f32 v7, v{n+2}, v{n+3}""")
            a(f"""
v_lshlrev_b32 v8, 14, v2
v_add_u32 v8, v8, v{VOW+hl%4}
ds_write_b64 v8, v[6:7] offset:{(hl//4)*8192+i*2048}""")
    a("s_waitcnt vmcnt(0)")
    bwrites(0)
    a("s_waitcnt lgkmcnt(0)")
    bloads(1)
    a("s_barrier")
    NS = 36
    for s in range(NS):
        b = s % 2
        abase = s * 8192 if s < 8 else b * 8192
        arv = VAR if s < 8 else 156
        for ks in range(2):
            for i in range(2):
                a(f"ds_read_b128 v[{AF2[ks]+4*i}:{AF2[ks]+4*i+3}], v{arv+ks} offset:{abase+i*2048}")
            for j in range(2):
                for half in range(2):
                    a(f"ds_read_b64_tr_b16 v[{BF2[ks]+4*j+2*half}:{BF2[ks]+4*j+2*half+1}], v{VBR+j} offset:{b*8192+ks*4096+half*512}")
        A0 = ACA if s < 8 else ACB
        for ks in range(2):
            a(f"s_waitcnt lgkmcnt({6 if ks == 0 else 0})")
            for j in range(2):
                for i in range(2):
                    c = A0 + 4 * (2 * j + i)
                    cin = "0" if (s in (0, 8) and ks == 0) else f"v[{c}:{c+3}]"
                    a(f"v_mfma_f32_16x16x32_bf16 v[{c}:{c+3}], v[{BF2[ks]+4*j}:{BF2[ks]+4*j+3}], v[{AF2[ks]+4*i}:{AF2[ks]+4*i+3}], {cin}")
        if s < NS - 1:
            a("s_waitcnt vmcnt(0)")
            bwrites(s + 1)
            a("s_waitcnt lgkmcnt(0)")
            if s < NS - 2:
                bloads(s + 2)
            a("s_barrier")
    a("s_nop 7\ns_nop 7")
    a(f"""
v_lshrrev_b32 v5, 1, v2
v_lshlrev_b32 v5, 5, v5
v_add_u32 v5, v5, v3
s_lshl_b32 s38, s36, 6
v_add_u32 v5, s38, v5
v_lshlrev_b32 v5, 10, v5
v_and_b32 v6, 1, v2
v_lshlrev_b32 v6, 6, v6
v_lshlrev_b32 v7, 3, v4
v_add3_u32 v5, v5, v6, v7
s_lshl_b32 s38, s37, 7
v_add_u32 v5, s38, v5""")
    for i in range(2):
        for j in range(2):
            a(f"buffer_load_dwordx2 v[{8+2*(2*i+j)}:{9+2*(2*i+j)}], v5, s[28:31], 0 offen offset:{i*16384+j*32}") if i == 0 else None
    a("v_add_u32 v6, 16384, v5")
    for j in range(2):
        a(f"buffer_load_dwordx2 v[{12+2*j}:{13+2*j}], v6, s[28:31], 0 offen offset:{j*32}")
    a("s_waitcnt vmcnt(0)")
    for i in range(2):
        for j in range(2):
            ca, cb = ACA + 4 * (2 * j + i), ACB + 4 * (2 * j + i)
            xr = 8 + 2 * (2 * i + j)
            round2(a, ca, ca + 1, 20)
            round2(a, ca + 2, ca + 3, 20)
            round2(a, cb, cb + 1, 20)
            round2(a, cb + 2, cb + 3, 20)
            a(f"""
v_lshlrev_b32 v20, 16, v{xr}
v_and_b32 v21, 0xffff0000, v{xr}
v_lshlrev_b32 v22, 16, v{xr+1}
v_and_b32 v23, 0xffff0000, v{xr+1}
v_add_f32 v20, v20, v{ca}
v_add_f32 v21, v21, v{ca+1}
v_add_f32 v22, v22, v{ca+2}
v_add_f32 v23, v23, v{ca+3}""")
            round2(a, 20, 21, 24)
            round2(a, 22, 23, 24)
            a(f"""
v_add_f32 v20, v20, v{cb}
v_add_f32 v21, v21, v{cb+1}
v_add_f32 v22, v22, v{cb+2}
v_add_f32 v23, v23, v{cb+3}
v_cvt_pk_bf16_f32 v24, v20, v21
v_cvt_pk_bf16_f32 v25, v22, v23
buffer_store_dwordx2 v[24:25], v{5+i}, s[32:35], 0 offen offset:{j*32}
s_nop 1""")
    a("s_waitcnt vmcnt(0)")
    a.label(end)
    a("s_endpgm")


def all_kernels():
    return [(gen_k0, "ln_kernel", 256, 256, 0, 64),
            (gen_k1, "gemm1_kernel", 640, 256, 65536, 244),
            (gen_k2, "gemm2_kernel", 256, 256, 98304, 160)]
```

```python
import sys

S, D, F, H = 2048, 512, 1792, 32
XN_OFF = 0
PHIQ_OFF = 2097152
H_OFF = 6291456
KVZ_OFF = 13631488
KVZ_BYTES = 32 * 17 * 32 * 4
WS_END = KVZ_OFF + KVZ_BYTES

NAME = "parallel_sum__linear_kernel_hedgehog__glu_gated_reglu__prompt"


class Asm:
    def __init__(self):
        self.lines = []
        self.lab = 0

    def __call__(self, s):
        for ln in s.strip("\n").split("\n"):
            self.lines.append("    " + ln.strip())

    def label(self, name):
        self.lines.append(name + ":")

    def newlab(self, p="L"):
        self.lab += 1
        return f"{p}_{self.lab}"

    def text(self):
        return "\n".join(self.lines) + "\n"


def kernel_begin(a, name):
    a.lines.append(f".globl {name}")
    a.lines.append(".p2align 8")
    a.lines.append(f".type {name},@function")
    a.lines.append(f"{name}:")


def kd(name, vgpr, sgpr=102):
    acc = (vgpr + 3) // 4 * 4
    return f""".amdhsa_kernel {name}
  .amdhsa_next_free_vgpr {vgpr}
  .amdhsa_next_free_sgpr {sgpr}
  .amdhsa_accum_offset {acc}
  .amdhsa_group_segment_fixed_size 0
  .amdhsa_kernarg_size 88
  .amdhsa_user_sgpr_count 2
  .amdhsa_user_sgpr_kernarg_segment_ptr 1
  .amdhsa_system_sgpr_workgroup_id_x 1
.end_amdhsa_kernel
"""


def srd(a, dst, ptr, nbytes):
    a(f"""
s_mov_b32 s{dst}, s{ptr}
s_mov_b32 s{dst+1}, s{ptr+1}
s_mov_b32 s{dst+2}, {nbytes}
s_mov_b32 s{dst+3}, 0x00020000""")


def gen_k0(a):
    kernel_begin(a, "ln_kernel")
    end = "LN_END"
    a(f"""
s_cmp_ge_u32 s2, 256
s_cbranch_scc1 {end}
s_load_dwordx2 s[4:5], s[0:1], 0
s_load_dwordx2 s[6:7], s[0:1], 80
s_waitcnt lgkmcnt(0)""")
    srd(a, 8, 4, S * D * 2)
    srd(a, 12, 6, WS_END)
    a("""
v_lshrrev_b32 v1, 6, v0
v_and_b32 v2, 63, v0
s_lshl_b32 s3, s2, 3
v_lshlrev_b32 v1, 1, v1
v_add_u32 v1, s3, v1
v_lshlrev_b32 v1, 10, v1
v_lshlrev_b32 v3, 4, v2
v_add_u32 v1, v1, v3
buffer_load_dwordx4 v[4:7], v1, s[8:11], 0 offen
buffer_load_dwordx4 v[8:11], v1, s[8:11], 0 offen offset:1024
""")
    for i, m in enumerate([1, 2, 4, 8, 16, 32]):
        a(f"""
v_xor_b32 v{40+i}, {m}, v2
v_lshlrev_b32 v{40+i}, 2, v{40+i}""")
    a(f"""
v_mov_b32 v60, 0
s_mul_i32 s16, s2, 272
v_lshlrev_b32 v61, 2, v0
v_add_u32 v61, s16, v61
v_cmp_gt_u32 vcc, 68, v0
s_and_saveexec_b64 s[18:19], vcc
buffer_store_dword v60, v61, s[12:15], 0 offen offset:0
""")
    a.lines.pop()
    a(f"""
s_mov_b32 s17, {KVZ_OFF}
buffer_store_dword v60, v61, s[12:15], s17 offen
s_mov_b64 exec, s[18:19]
s_waitcnt vmcnt(1)""")
    for r in range(2):
        src = 4 + 4 * r
        base = 16 + 8 * r
        if r == 1:
            a("s_waitcnt vmcnt(1)")
        for j in range(4):
            a(f"""
v_lshlrev_b32 v{base+2*j}, 16, v{src+j}
v_and_b32 v{base+2*j+1}, 0xffff0000, v{src+j}""")
    for r in range(2):
        base = 16 + 8 * r
        s = 32 + r
        a(f"v_add_f32 v{s}, v{base}, v{base+1}")
        for j in range(2, 8):
            a(f"v_add_f32 v{s}, v{s}, v{base+j}")

    def allreduce(regs, tmp):
        for i in range(6):
            for k, rg in enumerate(regs):
                a(f"ds_bpermute_b32 v{tmp+k}, v{40+i}, v{rg}")
            a("s_waitcnt lgkmcnt(0)")
            for k, rg in enumerate(regs):
                a(f"v_add_f32 v{rg}, v{rg}, v{tmp+k}")
    allreduce([32, 33], 50)
    a("s_mov_b32 s20, 0x3b000000")
    for r in range(2):
        a(f"v_mul_f32 v{32+r}, s20, v{32+r}")
    for r in range(2):
        base = 16 + 8 * r
        s = 34 + r
        a(f"v_mov_b32 v{s}, 0")
        for j in range(8):
            a(f"""
v_sub_f32 v52, v{base+j}, v{32+r}
v_fmac_f32 v{s}, v52, v52""")
    allreduce([34, 35], 50)
    for r in range(2):
        a(f"v_mul_f32 v{34+r}, s20, v{34+r}")
    a("s_mov_b32 s21, 0x3727c5ac")
    for r in range(2):
        m, v = 32 + r, 34 + r
        a(f"""
v_cvt_pk_bf16_f32 v52, v{m}, v{v}
v_lshlrev_b32 v{m}, 16, v52
v_and_b32 v{v}, 0xffff0000, v52
v_add_f32 v{v}, s21, v{v}
v_cvt_pk_bf16_f32 v52, v{v}, v{v}
v_and_b32 v{v}, 0xffff0000, v52
v_sqrt_f32 v{v}, v{v}
s_nop 0
v_cvt_pk_bf16_f32 v52, v{v}, v{v}
v_and_b32 v{v}, 0xffff0000, v52
v_rcp_f32 v{v}, v{v}
s_nop 0""")
    for r in range(2):
        base = 16 + 8 * r
        m, v = 32 + r, 34 + r
        for j in range(0, 8, 2):
            a(f"""
v_sub_f32 v52, v{base+j}, v{m}
v_sub_f32 v53, v{base+j+1}, v{m}
v_cvt_pk_bf16_f32 v54, v52, v53
v_lshlrev_b32 v52, 16, v54
v_and_b32 v53, 0xffff0000, v54
v_mul_f32 v52, v52, v{v}
v_mul_f32 v53, v53, v{v}
v_cvt_pk_bf16_f32 v{4+4*r+j//2}, v52, v53""")
    a(f"""
buffer_store_dwordx4 v[4:7], v1, s[12:15], 0 offen
buffer_store_dwordx4 v[8:11], v1, s[12:15], 0 offen offset:1024
s_waitcnt vmcnt(0)""")
    a.label(end)
    a("s_endpgm")


def header(launches):
    src = open("cdna_kernels/" + NAME + ".s.ref").read().split("\n")
    hdr = [l for l in src if l.startswith(";") and "@launch" not in l and "Override" not in l and "grid=ceil" not in l]
    out = "\n".join(hdr) + "\n"
    for (k, g, b, lds) in launches:
        out += f"; @launch kernel={k} grid=({g},1,1) block=({b},1,1) lds={lds}\n"
    return out


def build(kernels):
    a = Asm()
    out = header([(n, g, b, l) for (_, n, g, b, l, _) in kernels])
    out += '.amdgcn_target "amdgcn-amd-amdhsa--gfx950"\n.text\n'
    for (fn, n, g, b, l, v) in kernels:
        fn(a)
    out += a.text()
    out += '.section .rodata,"a"\n'
    for (fn, n, g, b, l, v) in kernels:
        out += ".p2align 6\n" + kd(n, v)
    return out


if __name__ == "__main__":
    from gen_k import all_kernels
    txt = build(all_kernels())
    open("cdna_kernels/" + NAME + ".s", "w").write(txt)
    print("written", len(txt))
```

```python
from gen import *

LOG2E = 0x3fb8aa3b

ACC, AF, BF, STA, STB, BADDR = 64, (128, 144), (160, 176), 192, 208, 224
V_AOFF, V_AW, V_BW, V_AR, V_BR = 232, 233, 234, 235, 237


def acc(j, i):
    return ACC + 4 * (4 * j + i)


def stg(s):
    return (192, 208) if s % 2 == 0 else (32, 48)


def k1_loads(a, s):
    STA, STB = stg(s)
    for i in range(4):
        a(f"buffer_load_dwordx4 v[{STA+4*i}:{STA+4*i+3}], v{V_AOFF}, s[16:19], s{24+i} offen offset:{s*128}")
    for i in range(4):
        a(f"global_load_dwordx4 v[{STB+4*i}:{STB+4*i+3}], v[{BADDR+2*i}:{BADDR+2*i+1}], off")
    for i in range(4):
        a(f"""
v_add_co_u32 v{BADDR+2*i}, vcc, s31, v{BADDR+2*i}
v_addc_co_u32 v{BADDR+2*i+1}, vcc, 0, v{BADDR+2*i+1}, vcc""")


def k1_writes(a, s):
    b = s % 2
    STA, STB = stg(s)
    for i in range(4):
        a(f"ds_write_b128 v{V_AW}, v[{STA+4*i}:{STA+4*i+3}] offset:{b*16384+i*4096}")
    for i in range(4):
        a(f"ds_write_b128 v{V_BW}, v[{STB+4*i}:{STB+4*i+3}] offset:{b*16384+i*4096}")


def k1_stage(a, s, kvmode):
    b = s % 2
    for ks in range(2):
        for i in range(4):
            a(f"ds_read_b128 v[{AF[ks]+4*i}:{AF[ks]+4*i+3}], v{V_AR+ks} offset:{b*16384+i*2048}")
        for j in range(4):
            for half in range(2):
                a(f"ds_read_b64_tr_b16 v[{BF[ks]+4*j+2*half}:{BF[ks]+4*j+2*half+1}], v{V_BR+j} offset:{b*16384+ks*8192+half*1024}")
    for ks in range(2):
        a(f"s_waitcnt lgkmcnt({12 if ks == 0 else 0})")
        for j in range(4):
            for i in range(4):
                c = acc(j, i)
                cin = "0" if (s == 0 and ks == 0) else f"v[{c}:{c+3}]"
                af = f"v[{AF[ks]+4*i}:{AF[ks]+4*i+3}]"
                bf = f"v[{BF[ks]+4*j}:{BF[ks]+4*j+3}]"
                if kvmode and (j % 2 == 1):
                    a(f"v_mfma_f32_16x16x32_bf16 v[{c}:{c+3}], {af}, {bf}, {cin}")
                else:
                    a(f"v_mfma_f32_16x16x32_bf16 v[{c}:{c+3}], {bf}, {af}, {cin}")
    if s < 7:
        a(f"s_waitcnt vmcnt({8 if s < 6 else 0})")
        k1_writes(a, s + 1)
        a("s_waitcnt lgkmcnt(0)")
        if s < 5:
            k1_loads(a, s + 3)
    a("s_barrier")


def round2(a, ra, rb, tmp):
    a(f"""
v_cvt_pk_bf16_f32 v{tmp}, v{ra}, v{rb}
v_lshlrev_b32 v{ra}, 16, v{tmp}
v_and_b32 v{rb}, 0xffff0000, v{tmp}""")


def softmax4(a, groups, outs):
    n = len(groups)
    MX, MN, T = 32, 36, 40
    for t, p in enumerate(groups):
        a(f"""
v_max_f32 v{MX+t}, v{p}, v{p+1}
v_max3_f32 v{MX+t}, v{MX+t}, v{p+2}, v{p+3}
v_min_f32 v{MN+t}, v{p}, v{p+1}
v_min3_f32 v{MN+t}, v{MN+t}, v{p+2}, v{p+3}""")
    for ad in (20, 21):
        for t in range(n):
            a(f"ds_bpermute_b32 v{T+t}, v{ad}, v{MX+t}")
            a(f"ds_bpermute_b32 v{T+4+t}, v{ad}, v{MN+t}")
        a("s_waitcnt lgkmcnt(0)")
        for t in range(n):
            a(f"v_max_f32 v{MX+t}, v{MX+t}, v{T+t}")
            a(f"v_min_f32 v{MN+t}, v{MN+t}, v{T+4+t}")
    a(f"s_mov_b32 s40, {LOG2E}")
    for t, p in enumerate(groups):
        o = outs[t]
        for r in range(4):
            a(f"""
v_sub_f32 v{o+r}, v{MN+t}, v{p+r}
v_mul_f32 v{o+r}, s40, v{o+r}
v_exp_f32 v{o+r}, v{o+r}
v_sub_f32 v{p+r}, v{p+r}, v{MX+t}
v_mul_f32 v{p+r}, s40, v{p+r}
v_exp_f32 v{p+r}, v{p+r}""")
    a("s_nop 0")
    for t, p in enumerate(groups):
        o = outs[t]
        a(f"""
v_add_f32 v{MX+t}, v{p}, v{p+1}
v_add_f32 v{MX+t}, v{MX+t}, v{p+2}
v_add_f32 v{MX+t}, v{MX+t}, v{p+3}
v_add_f32 v{MN+t}, v{o}, v{o+1}
v_add_f32 v{MN+t}, v{MN+t}, v{o+2}
v_add_f32 v{MN+t}, v{MN+t}, v{o+3}""")
    for ad in (20, 21):
        for t in range(n):
            a(f"ds_bpermute_b32 v{T+t}, v{ad}, v{MX+t}")
            a(f"ds_bpermute_b32 v{T+4+t}, v{ad}, v{MN+t}")
        a("s_waitcnt lgkmcnt(0)")
        for t in range(n):
            a(f"v_add_f32 v{MX+t}, v{MX+t}, v{T+t}")
            a(f"v_add_f32 v{MN+t}, v{MN+t}, v{T+4+t}")
    for t in range(n):
        a(f"""
v_rcp_f32 v{MX+t}, v{MX+t}
v_rcp_f32 v{MN+t}, v{MN+t}""")
    a("s_nop 0")
    for t, p in enumerate(groups):
        o = outs[t]
        for r in range(4):
            a(f"""
v_mul_f32 v{p+r}, v{p+r}, v{MX+t}
v_mul_f32 v{o+r}, v{o+r}, v{MN+t}""")
        a(f"""
v_cvt_pk_bf16_f32 v{o+2}, v{o+2}, v{o+3}
v_cvt_pk_bf16_f32 v{o+3}, v{o}, v{o+1}
v_cvt_pk_bf16_f32 v{o}, v{p}, v{p+1}
v_cvt_pk_bf16_f32 v{o+1}, v{p+2}, v{p+3}""")
        a(f"""
v_mov_b32 v3, v{o+2}
v_mov_b32 v{o+2}, v{o+3}
v_mov_b32 v{o+3}, v3""")


def load_wfrag(a, dst, head_sgpr_bytes):
    for j in range(4):
        a(f"buffer_load_ushort v{3+j}, v22, s[20:23], s{head_sgpr_bytes} offen offset:{32*j}")
    a("s_waitcnt vmcnt(0)")
    a(f"""
v_lshl_or_b32 v{dst}, v4, 16, v3
v_lshl_or_b32 v{dst+1}, v6, 16, v5""")


def gen_k1(a):
    kernel_begin(a, "gemm1_kernel")
    end = "K1_END"
    a(f"""
s_cmp_ge_u32 s2, 640
s_cbranch_scc1 {end}
s_load_dwordx4 s[4:7], s[0:1], 8
s_load_dwordx4 s[8:11], s[0:1], 40
s_load_dwordx2 s[12:13], s[0:1], 80
s_and_b32 s28, s2, 15
s_lshr_b32 s29, s2, 4
s_mov_b32 s24, 0
s_mov_b32 s25, 32768
s_mov_b32 s26, 65536
s_mov_b32 s27, 98304
v_and_b32 v1, 63, v0
v_lshrrev_b32 v2, 6, v0
s_waitcnt lgkmcnt(0)""")
    srd(a, 16, 12, WS_END)
    srd(a, 20, 6, 16384)
    a("""
s_lshl_b32 s32, s28, 17
v_lshrrev_b32 v3, 3, v0
v_lshlrev_b32 v3, 10, v3
v_and_b32 v4, 7, v0
v_lshlrev_b32 v5, 4, v4
v_add_u32 v3, v3, v5
v_add_u32 v232, s32, v3""")
    a("""
v_lshrrev_b32 v3, 3, v0
v_and_b32 v5, 7, v3
v_xor_b32 v5, v5, v4
v_lshlrev_b32 v5, 4, v5
v_lshlrev_b32 v3, 7, v3
v_add_u32 v233, v3, v5""")
    a("""
v_lshrrev_b32 v3, 4, v0
v_and_b32 v4, 15, v0
v_and_b32 v5, 3, v3
v_lshrrev_b32 v6, 3, v3
v_and_b32 v6, 1, v6
v_lshl_or_b32 v5, v6, 2, v5
v_lshrrev_b32 v6, 1, v4
v_xor_b32 v5, v5, v6
v_lshlrev_b32 v5, 5, v5
v_and_b32 v6, 1, v4
v_lshlrev_b32 v6, 4, v6
v_lshlrev_b32 v7, 8, v3
v_add3_u32 v234, v5, v6, v7
v_add_u32 v234, 32768, v234""")
    a("""
v_lshrrev_b32 v3, 1, v2
v_lshlrev_b32 v3, 6, v3
v_and_b32 v4, 15, v1
v_add_u32 v3, v3, v4
v_lshlrev_b32 v3, 7, v3
v_lshrrev_b32 v5, 4, v1
v_and_b32 v6, 7, v1
v_xor_b32 v7, v5, v6
v_lshlrev_b32 v7, 4, v7
v_add_u32 v235, v3, v7
v_add_u32 v5, 4, v5
v_xor_b32 v7, v5, v6
v_lshlrev_b32 v7, 4, v7
v_add_u32 v236, v3, v7""")
    a("""
v_and_b32 v3, 15, v1
v_lshrrev_b32 v4, 2, v3
v_and_b32 v5, 3, v3
v_lshrrev_b32 v6, 4, v1
v_lshlrev_b32 v7, 3, v6
v_add_u32 v7, v7, v4
v_lshlrev_b32 v7, 8, v7
v_lshlrev_b32 v5, 3, v5
v_add_u32 v7, v7, v5
v_add_u32 v7, 32768, v7
v_and_b32 v6, 1, v6
v_lshl_or_b32 v4, v6, 2, v4
v_and_b32 v8, 1, v2
v_lshlrev_b32 v8, 2, v8""")
    for j in range(4):
        a(f"""
v_add_u32 v9, {j}, v8
v_xor_b32 v9, v9, v4
v_lshlrev_b32 v9, 5, v9
v_add_u32 v{V_BR+j}, v7, v9""")
    a("""
v_xor_b32 v20, 16, v1
v_lshlrev_b32 v20, 2, v20
v_xor_b32 v21, 32, v1
v_lshlrev_b32 v21, 2, v21
v_lshrrev_b32 v22, 4, v1
v_lshlrev_b32 v22, 7, v22
v_and_b32 v3, 15, v1
v_lshl_add_u32 v22, v3, 1, v22""")
    lkv, lq, lgu, lcommon = "K1_KV", "K1_Q", "K1_GU", "K1_COMMON"
    a(f"""
v_and_b32 v4, 15, v0
v_lshrrev_b32 v5, 1, v4
v_and_b32 v6, 1, v4
s_cmp_lt_u32 s29, 8
s_cbranch_scc1 {lkv}
s_cmp_lt_u32 s29, 12
s_cbranch_scc1 {lq}""")
    a(f"""
s_sub_u32 s33, s29, 12
s_lshl_b32 s34, s33, 7
v_lshrrev_b32 v7, 2, v5
v_lshlrev_b32 v7, 6, v7
v_and_b32 v8, 1, v5
v_lshlrev_b32 v8, 5, v8
v_lshlrev_b32 v9, 4, v6
v_add3_u32 v10, v7, v8, v9
v_add_u32 v10, s34, v10
v_and_b32 v7, 2, v5
v_cmp_ne_u32 vcc, 0, v7
v_mov_b32 v11, s8
v_mov_b32 v12, s9
v_mov_b32 v13, s10
v_mov_b32 v14, s11
v_cndmask_b32 v11, v11, v13, vcc
v_cndmask_b32 v12, v12, v14, vcc
s_mov_b32 s30, 3584
s_branch {lcommon}""")
    a.label(lq)
    a(f"""
s_sub_u32 s33, s29, 8
s_lshl_b32 s34, s33, 8
v_lshlrev_b32 v10, 4, v4
v_add_u32 v10, s34, v10
v_mov_b32 v11, s4
v_mov_b32 v12, s5
s_mov_b32 s30, 3072
s_branch {lcommon}""")
    a.label(lkv)
    a(f"""
s_lshl_b32 s34, s29, 7
s_add_u32 s34, s34, 1024
v_and_b32 v7, 1, v5
v_lshlrev_b32 v7, 10, v7
v_lshrrev_b32 v8, 1, v5
v_lshlrev_b32 v8, 5, v8
v_lshlrev_b32 v9, 4, v6
v_add3_u32 v10, v7, v8, v9
v_add_u32 v10, s34, v10
v_mov_b32 v11, s4
v_mov_b32 v12, s5
s_mov_b32 s30, 3072""")
    a.label(lcommon)
    a("""
s_lshl_b32 s31, s30, 6
v_lshrrev_b32 v3, 4, v0
v_mul_lo_u32 v3, v3, s30
v_add_u32 v3, v3, v10
s_lshl_b32 s35, s30, 4""")
    for i in range(4):
        a(f"""
v_add_co_u32 v{BADDR+2*i}, vcc, v11, v3
v_addc_co_u32 v{BADDR+2*i+1}, vcc, 0, v12, vcc
v_add_u32 v3, s35, v3""")
    k1_loads(a, 0)
    k1_loads(a, 1)
    a("s_waitcnt vmcnt(8)")
    k1_writes(a, 0)
    a("s_waitcnt lgkmcnt(0)")
    k1_loads(a, 2)
    a("s_barrier")
    lloop_kv = "K1_LOOP_KV"
    a(f"""
s_cmp_lt_u32 s29, 8
s_cbranch_scc1 {lloop_kv}""")
    for s in range(8):
        k1_stage(a, s, False)
    a("""
s_nop 7
s_nop 7""")
    lepi_q = "K1_EPI_Q"
    a(f"""
s_cmp_lt_u32 s29, 12
s_cbranch_scc1 {lepi_q}""")
    a(f"""
v_lshrrev_b32 v3, 1, v2
v_lshlrev_b32 v3, 6, v3
v_and_b32 v4, 15, v1
v_add_u32 v3, v3, v4
s_lshl_b32 s32, s28, 7
v_add_u32 v3, s32, v3
s_mov_b32 s36, 3584
v_mul_lo_u32 v3, v3, s36
v_and_b32 v4, 1, v2
v_lshlrev_b32 v4, 6, v4
v_lshrrev_b32 v5, 4, v1
v_lshlrev_b32 v5, 3, v5
v_add3_u32 v3, v3, v4, v5
s_lshl_b32 s32, s33, 7
s_add_u32 s32, s32, {H_OFF}""")
    for i in range(4):
        for jj in range(2):
            g, u = acc(jj, i), acc(jj + 2, i)
            round2(a, g, g + 1, 5)
            round2(a, g + 2, g + 3, 5)
            round2(a, u, u + 1, 5)
            round2(a, u + 2, u + 3, 5)
            for r in range(4):
                a(f"""
v_max_f32 v{g+r}, 0, v{g+r}
v_mul_f32 v{g+r}, v{g+r}, v{u+r}""")
            a(f"""
v_cvt_pk_bf16_f32 v6, v{g}, v{g+1}
v_cvt_pk_bf16_f32 v7, v{g+2}, v{g+3}
buffer_store_dwordx2 v[6:7], v3, s[16:19], s32 offen offset:{32*jj}""")
        if i < 3:
            a(f"v_add_u32 v3, {16*3584}, v3")
    a(f"s_branch {end}")
    a.label(lepi_q)
    a(f"""
v_lshrrev_b32 v3, 1, v2
v_lshlrev_b32 v3, 6, v3
v_and_b32 v4, 15, v1
v_add_u32 v3, v3, v4
s_lshl_b32 s32, s28, 7
v_add_u32 v3, s32, v3
v_lshlrev_b32 v3, 11, v3
v_and_b32 v4, 1, v2
v_lshlrev_b32 v4, 8, v4
v_lshrrev_b32 v5, 4, v1
v_lshlrev_b32 v5, 4, v5
v_add3_u32 v23, v3, v4, v5
s_lshl_b32 s32, s33, 9
s_add_u32 s32, s32, {PHIQ_OFF}
v_readfirstlane_b32 s37, v2
s_and_b32 s37, s37, 1
s_lshl_b32 s37, s37, 2
s_lshl_b32 s38, s33, 3
s_add_u32 s37, s37, s38""")
    for j in range(4):
        a(f"""
s_add_u32 s38, s37, {j}
s_lshl_b32 s38, s38, 9""")
        load_wfrag(a, 24, 38)
        groups = []
        for i in range(4):
            c = acc(j, i)
            a(f"""
v_cvt_pk_bf16_f32 v26, v{c}, v{c+1}
v_cvt_pk_bf16_f32 v27, v{c+2}, v{c+3}
s_nop 1
v_mfma_f32_16x16x16_bf16 v[{c}:{c+3}], v[24:25], v[26:27], 0""")
            groups.append(c)
        a("""
s_nop 7
s_nop 7""")
        for c in groups:
            round2(a, c, c + 1, 5)
            round2(a, c + 2, c + 3, 5)
        outs = [48 + 4 * i for i in range(4)]
        softmax4(a, groups, outs)
        for i in range(4):
            o = outs[i]
            a(f"buffer_store_dwordx4 v[{o}:{o+3}], v23, s[16:19], s32 offen offset:{64*j}")
            if i < 3:
                a(f"v_add_u32 v23, {16*2048}, v23")
        a(f"v_subrev_u32 v23, {3*16*2048}, v23")
        a("s_nop 1")
    a(f"s_branch {end}")
    a.label(lloop_kv)
    for s in range(8):
        k1_stage(a, s, True)
    a("""
s_nop 7
s_nop 7""")
    a(f"""
v_lshlrev_b32 v23, 12, v2
v_and_b32 v3, 15, v1
v_lshlrev_b32 v4, 6, v3
v_lshrrev_b32 v5, 4, v1
v_lshlrev_b32 v6, 4, v5
v_add3_u32 v23, v23, v4, v6
v_lshrrev_b32 v4, 2, v3
v_and_b32 v6, 3, v3
v_lshlrev_b32 v7, 2, v5
v_add_u32 v7, v7, v4
v_lshlrev_b32 v7, 6, v7
v_lshlrev_b32 v6, 3, v6
v_lshlrev_b32 v28, 12, v2
v_add3_u32 v28, v28, v7, v6
v_readfirstlane_b32 s37, v2
s_and_b32 s37, s37, 1
s_lshl_b32 s37, s37, 1
s_lshl_b32 s38, s29, 2
s_add_u32 s37, s37, s38""")
    a("""
v_lshlrev_b32 v29, 7, v3
v_lshlrev_b32 v4, 4, v5
v_add_u32 v29, v29, v4
v_lshlrev_b32 v30, 4, v5
v_mov_b32 v19, v3
v_mov_b32 v31, 0x3f803f80""")
    for hh in range(2):
        a(f"""
s_add_u32 s38, s37, {hh}
s_mul_i32 s39, s38, 2176
s_add_u32 s39, s39, {KVZ_OFF}
s_lshl_b32 s38, s38, 9""")
        load_wfrag(a, 24, 38)
        groups = []
        for i in range(4):
            c = acc(2 * hh, i)
            a(f"""
v_cvt_pk_bf16_f32 v26, v{c}, v{c+1}
v_cvt_pk_bf16_f32 v27, v{c+2}, v{c+3}
s_nop 1
v_mfma_f32_16x16x16_bf16 v[{c}:{c+3}], v[24:25], v[26:27], 0""")
            groups.append(c)
        a("""
s_nop 7
s_nop 7""")
        for c in groups:
            round2(a, c, c + 1, 5)
            round2(a, c + 2, c + 3, 5)
        outs = [48 + 4 * i for i in range(4)]
        softmax4(a, groups, outs)
        for i in range(4):
            o = outs[i]
            a(f"ds_write_b128 v23, v[{o}:{o+3}] offset:{i*1024}")
        for p in range(2):
            for t in range(2):
                c = acc(2 * hh + 1, 2 * p + t)
                a(f"""
v_cvt_pk_bf16_f32 v{128+4*p+2*t}, v{c}, v{c+1}
v_cvt_pk_bf16_f32 v{128+4*p+2*t+1}, v{c+2}, v{c+3}""")
        a("s_waitcnt lgkmcnt(0)")
        for fh in range(2):
            for p in range(2):
                for t in range(2):
                    a(f"ds_read_b64_tr_b16 v[{136+8*fh+4*p+2*t}:{136+8*fh+4*p+2*t+1}], v28 offset:{(32*p+16*t)*64+fh*32}")
        a("s_waitcnt lgkmcnt(0)")
        for fh in range(2):
            for p in range(2):
                cin = "0" if p == 0 else f"v[{152+4*fh}:{152+4*fh+3}]"
                a(f"v_mfma_f32_16x16x32_bf16 v[{152+4*fh}:{152+4*fh+3}], v[{136+8*fh+4*p}:{136+8*fh+4*p+3}], v[{128+4*p}:{128+4*p+3}], {cin}")
        a("""
v_mov_b32 v168, v31
v_mov_b32 v169, v31
v_mov_b32 v170, v31
v_mov_b32 v171, v31
s_nop 1""")
        for fh in range(2):
            for p in range(2):
                cin = "0" if p == 0 else f"v[{160+4*fh}:{160+4*fh+3}]"
                a(f"v_mfma_f32_16x16x32_bf16 v[{160+4*fh}:{160+4*fh+3}], v[{136+8*fh+4*p}:{136+8*fh+4*p+3}], v[168:171], {cin}")
        a("""
s_nop 7
s_nop 7""")
        for fh in range(2):
            for r in range(4):
                a(f"buffer_atomic_add_f32 v{152+4*fh+r}, v29, s[16:19], s39 offen offset:{64*fh+4*r}")
        a("""
v_cmp_eq_u32 vcc, 0, v19
s_and_saveexec_b64 s[42:43], vcc""")
        for fh in range(2):
            for r in range(4):
                a(f"buffer_atomic_add_f32 v{160+4*fh+r}, v30, s[16:19], s39 offen offset:{2048+64*fh+4*r}")
        a("s_mov_b64 exec, s[42:43]")
        a("s_waitcnt vmcnt(0)")
    a.label(end)
    a("s_endpgm")


def gen_k2(a):
    kernel_begin(a, "gemm2_kernel")
    end = "K2_END"
    ACA, ACB = 64, 80
    AF2, BF2 = (96, 104), (112, 120)
    SA, SB = 128, 136
    VAO, VBO, VAW, VBW, VAR, VBR, VOW = 144, 145, 146, 147, 148, 150, 152
    a(f"""
s_cmp_ge_u32 s2, 256
s_cbranch_scc1 {end}
s_load_dwordx2 s[4:5], s[0:1], 0
s_load_dwordx2 s[6:7], s[0:1], 24
s_load_dwordx4 s[8:11], s[0:1], 56
s_load_dwordx2 s[12:13], s[0:1], 80
s_and_b32 s36, s2, 31
s_lshr_b32 s37, s2, 5
v_and_b32 v1, 63, v0
v_lshrrev_b32 v2, 6, v0
s_waitcnt lgkmcnt(0)""")
    srd(a, 16, 12, WS_END)
    srd(a, 20, 6, 524288)
    srd(a, 24, 8, 1835008)
    srd(a, 28, 4, 2097152)
    srd(a, 32, 10, 2097152)
    a(f"""
v_and_b32 v3, 15, v1
v_lshrrev_b32 v4, 4, v1
; B voffset = (t/8)*1024 + n0*2 + (t%8)*16
v_lshrrev_b32 v5, 3, v0
v_and_b32 v6, 7, v0
v_lshlrev_b32 v7, 10, v5
v_lshlrev_b32 v8, 4, v6
s_lshl_b32 s38, s37, 7
v_add3_u32 v{VBO}, v7, v8, s38
; A(h) voffset = (m0 + t/8)*3584 + (t%8)*16
s_lshl_b32 s38, s36, 6
v_add_u32 v7, s38, v5
s_mov_b32 s39, 3584
v_mul_lo_u32 v7, v7, s39
v_add_u32 v{VAO}, v7, v8
v_and_b32 v7, 7, v5
v_xor_b32 v7, v7, v6
v_lshlrev_b32 v7, 4, v7
v_lshl_add_u32 v{VAW}, v5, 7, v7
v_add_u32 v{VAW}, 65536, v{VAW}
v_lshrrev_b32 v7, 1, v5
v_and_b32 v7, 1, v7
v_lshrrev_b32 v8, 3, v5
v_and_b32 v8, 1, v8
v_lshl_or_b32 v7, v8, 1, v7
v_lshrrev_b32 v8, 1, v6
v_xor_b32 v7, v7, v8
v_lshlrev_b32 v7, 5, v7
v_and_b32 v8, 1, v6
v_lshlrev_b32 v8, 4, v8
v_lshlrev_b32 v9, 7, v5
v_add3_u32 v{VBW}, v7, v8, v9
v_add_u32 v{VBW}, 81920, v{VBW}
; A read: row = wm*32 + l%16
v_lshrrev_b32 v5, 1, v2
v_lshlrev_b32 v5, 5, v5
v_add_u32 v5, v5, v3
v_lshlrev_b32 v5, 7, v5
v_and_b32 v6, 7, v1
v_xor_b32 v7, v4, v6
v_lshl_add_u32 v{VAR}, v7, 4, v5
v_add_u32 v7, 4, v4
v_xor_b32 v7, v7, v6
v_lshl_add_u32 v{VAR+1}, v7, 4, v5
v_add_u32 v156, 65536, v{VAR}
v_add_u32 v157, 65536, v{VAR+1}
v_lshrrev_b32 v5, 2, v3
v_and_b32 v6, 3, v3
v_lshlrev_b32 v7, 3, v4
v_add_u32 v7, v7, v5
v_lshlrev_b32 v7, 7, v7
v_lshl_add_u32 v7, v6, 3, v7
v_add_u32 v7, 81920, v7
v_lshrrev_b32 v8, 1, v5
v_and_b32 v9, 1, v4
v_lshl_or_b32 v8, v9, 1, v8
v_and_b32 v9, 1, v2
v_lshlrev_b32 v9, 1, v9""")
    for j in range(2):
        a(f"""
v_add_u32 v10, {j}, v9
v_xor_b32 v10, v10, v8
v_lshlrev_b32 v10, 5, v10
v_add_u32 v{VBR+j}, v7, v10""")
    for hc in range(4):
        a(f"""
v_lshrrev_b32 v5, 1, v4
v_add_u32 v5, {2*hc}, v5
v_and_b32 v6, 7, v3
v_xor_b32 v5, v5, v6
v_lshlrev_b32 v5, 4, v5
v_and_b32 v6, 1, v4
v_lshlrev_b32 v6, 3, v6
v_lshlrev_b32 v7, 7, v3
v_add3_u32 v{VOW+hc}, v5, v6, v7""")

    def sset(s):
        return [(128, 136), (160, 168), (176, 184)][s % 3]

    def nld(s):
        return 4 if s >= 8 else 2

    def bloads(s):
        SA, SB = sset(s)
        for i in range(2):
            if s < 8:
                a(f"s_mov_b32 s40, {s*65536+i*32768}\nbuffer_load_dwordx4 v[{SB+4*i}:{SB+4*i+3}], v{VBO}, s[20:23], s40 offen")
            else:
                a(f"s_mov_b32 s40, {(s-8)*65536+i*32768}\nbuffer_load_dwordx4 v[{SB+4*i}:{SB+4*i+3}], v{VBO}, s[24:27], s40 offen")
        if s >= 8:
            for i in range(2):
                a(f"s_mov_b32 s40, {H_OFF+i*114688}\nbuffer_load_dwordx4 v[{SA+4*i}:{SA+4*i+3}], v{VAO}, s[16:19], s40 offen offset:{(s-8)*128}")

    def bwrites(s):
        b = s % 2
        SA, SB = sset(s)
        for i in range(2):
            a(f"ds_write_b128 v{VBW}, v[{SB+4*i}:{SB+4*i+3}] offset:{b*8192+i*4096}")
        if s >= 8:
            for i in range(2):
                a(f"ds_write_b128 v{VAW}, v[{SA+4*i}:{SA+4*i+3}] offset:{b*8192+i*4096}")

    bloads(0)
    bloads(1)
    bloads(2)
    a(f"""
s_lshl_b32 s38, s36, 6
v_add_u32 v20, s38, v3
v_lshlrev_b32 v20, 11, v20
v_lshl_add_u32 v20, v4, 4, v20
v_lshlrev_b32 v21, 7, v3
v_lshl_add_u32 v21, v4, 5, v21
v_lshlrev_b32 v22, 5, v4
v_readfirstlane_b32 s41, v2
s_lshl_b32 s41, s41, 3
s_mov_b32 s45, 0x358637bd""")
    def oloads(hl):
        R = 24 if hl % 2 == 0 else 192
        a(f"""
s_add_u32 s42, s41, {hl}
s_mul_i32 s43, s42, 2176
s_add_u32 s43, s43, {KVZ_OFF}
s_lshl_b32 s44, s42, 6
s_add_u32 s44, s44, {PHIQ_OFF}
buffer_load_dwordx4 v[{R}:{R+3}], v21, s[16:19], s43 offen
buffer_load_dwordx4 v[{R+4}:{R+7}], v21, s[16:19], s43 offen offset:16
buffer_load_dwordx4 v[{R+8}:{R+11}], v22, s[16:19], s43 offen offset:2048
buffer_load_dwordx4 v[{R+12}:{R+15}], v22, s[16:19], s43 offen offset:2064""")
        for i in range(4):
            a(f"""
s_mov_b32 s46, {i*16*2048}
s_add_u32 s46, s46, s44
buffer_load_dwordx4 v[{R+16+4*i}:{R+19+4*i}], v20, s[16:19], s46 offen""")

    oloads(0)
    for hl in range(8):
        R = 24 if hl % 2 == 0 else 192
        if hl < 7:
            oloads(hl + 1)
            a("s_waitcnt vmcnt(8)")
        else:
            a("s_waitcnt vmcnt(0)")
        a(f"""
v_cvt_pk_bf16_f32 v{R}, v{R}, v{R+1}
v_cvt_pk_bf16_f32 v{R+1}, v{R+2}, v{R+3}
v_cvt_pk_bf16_f32 v{R+2}, v{R+4}, v{R+5}
v_cvt_pk_bf16_f32 v{R+3}, v{R+6}, v{R+7}
v_cvt_pk_bf16_f32 v{R+8}, v{R+8}, v{R+9}
v_cvt_pk_bf16_f32 v{R+9}, v{R+10}, v{R+11}
v_cvt_pk_bf16_f32 v{R+10}, v{R+12}, v{R+13}
v_cvt_pk_bf16_f32 v{R+11}, v{R+14}, v{R+15}
s_nop 1""")
        for i in range(4):
            a(f"""
v_mfma_f32_16x16x32_bf16 v[{96+4*i}:{99+4*i}], v[{R}:{R+3}], v[{R+16+4*i}:{R+19+4*i}], 0
v_mfma_f32_16x16x32_bf16 v[{112+4*i}:{115+4*i}], v[{R+8}:{R+11}], v[{R+16+4*i}:{R+19+4*i}], 0""")
        a("s_nop 7\ns_nop 7")
        for i in range(4):
            n, d = 96 + 4 * i, 112 + 4 * i
            a(f"""
v_cvt_pk_bf16_f32 v5, v{d}, v{d}
v_and_b32 v5, 0xffff0000, v5
v_add_f32 v5, s45, v5
v_cvt_pk_bf16_f32 v5, v5, v5
v_and_b32 v5, 0xffff0000, v5
v_rcp_f32 v5, v5""")
            round2(a, n, n + 1, 6)
            round2(a, n + 2, n + 3, 6)
            a(f"""
v_mul_f32 v{n}, v{n}, v5
v_mul_f32 v{n+1}, v{n+1}, v5
v_mul_f32 v{n+2}, v{n+2}, v5
v_mul_f32 v{n+3}, v{n+3}, v5
v_cvt_pk_bf16_f32 v6, v{n}, v{n+1}
v_cvt_pk_bf16_f32 v7, v{n+2}, v{n+3}
v_lshlrev_b32 v8, 14, v2
v_add_u32 v8, v8, v{VOW+hl%4}
ds_write_b64 v8, v[6:7] offset:{(hl//4)*8192+i*2048}""")
    a("s_waitcnt vmcnt(0)")
    bwrites(0)
    a("s_waitcnt lgkmcnt(0)")
    bloads(3)
    a("s_barrier")
    NS = 36
    for s in range(NS):
        b = s % 2
        abase = s * 8192 if s < 8 else b * 8192
        arv = VAR if s < 8 else 156
        for ks in range(2):
            for i in range(2):
                a(f"ds_read_b128 v[{AF2[ks]+4*i}:{AF2[ks]+4*i+3}], v{arv+ks} offset:{abase+i*2048}")
            for j in range(2):
                for half in range(2):
                    a(f"ds_read_b64_tr_b16 v[{BF2[ks]+4*j+2*half}:{BF2[ks]+4*j+2*half+1}], v{VBR+j} offset:{b*8192+ks*4096+half*512}")
        A0 = ACA if s < 8 else ACB
        for ks in range(2):
            a(f"s_waitcnt lgkmcnt({6 if ks == 0 else 0})")
            for j in range(2):
                for i in range(2):
                    c = A0 + 4 * (2 * j + i)
                    cin = "0" if (s in (0, 8) and ks == 0) else f"v[{c}:{c+3}]"
                    a(f"v_mfma_f32_16x16x32_bf16 v[{c}:{c+3}], v[{BF2[ks]+4*j}:{BF2[ks]+4*j+3}], v[{AF2[ks]+4*i}:{AF2[ks]+4*i+3}], {cin}")
        if s < NS - 1:
            outst = sum(nld(t) for t in range(s + 2, min(s + 4, NS)))
            a(f"s_waitcnt vmcnt({outst})")
            bwrites(s + 1)
            a("s_waitcnt lgkmcnt(0)")
            if s + 4 < NS:
                bloads(s + 4)
            a("s_barrier")
    a("s_nop 7\ns_nop 7")
    a(f"""
v_lshrrev_b32 v5, 1, v2
v_lshlrev_b32 v5, 5, v5
v_add_u32 v5, v5, v3
s_lshl_b32 s38, s36, 6
v_add_u32 v5, s38, v5
v_lshlrev_b32 v5, 10, v5
v_and_b32 v6, 1, v2
v_lshlrev_b32 v6, 6, v6
v_lshlrev_b32 v7, 3, v4
v_add3_u32 v5, v5, v6, v7
s_lshl_b32 s38, s37, 7
v_add_u32 v5, s38, v5""")
    for i in range(2):
        for j in range(2):
            a(f"buffer_load_dwordx2 v[{8+2*(2*i+j)}:{9+2*(2*i+j)}], v5, s[28:31], 0 offen offset:{i*16384+j*32}") if i == 0 else None
    a("v_add_u32 v6, 16384, v5")
    for j in range(2):
        a(f"buffer_load_dwordx2 v[{12+2*j}:{13+2*j}], v6, s[28:31], 0 offen offset:{j*32}")
    a("s_waitcnt vmcnt(0)")
    for i in range(2):
        for j in range(2):
            ca, cb = ACA + 4 * (2 * j + i), ACB + 4 * (2 * j + i)
            xr = 8 + 2 * (2 * i + j)
            round2(a, ca, ca + 1, 20)
            round2(a, ca + 2, ca + 3, 20)
            round2(a, cb, cb + 1, 20)
            round2(a, cb + 2, cb + 3, 20)
            a(f"""
v_lshlrev_b32 v20, 16, v{xr}
v_and_b32 v21, 0xffff0000, v{xr}
v_lshlrev_b32 v22, 16, v{xr+1}
v_and_b32 v23, 0xffff0000, v{xr+1}
v_add_f32 v20, v20, v{ca}
v_add_f32 v21, v21, v{ca+1}
v_add_f32 v22, v22, v{ca+2}
v_add_f32 v23, v23, v{ca+3}""")
            round2(a, 20, 21, 24)
            round2(a, 22, 23, 24)
            a(f"""
v_add_f32 v20, v20, v{cb}
v_add_f32 v21, v21, v{cb+1}
v_add_f32 v22, v22, v{cb+2}
v_add_f32 v23, v23, v{cb+3}
v_cvt_pk_bf16_f32 v24, v20, v21
v_cvt_pk_bf16_f32 v25, v22, v23
buffer_store_dwordx2 v[24:25], v{5+i}, s[32:35], 0 offen offset:{j*32}
s_nop 1""")
    a("s_waitcnt vmcnt(0)")
    a.label(end)
    a("s_endpgm")


def all_kernels():
    return [(gen_k0, "ln_kernel", 256, 256, 0, 64),
            (gen_k1, "gemm1_kernel", 640, 256, 65536, 244),
            (gen_k2, "gemm2_kernel", 256, 256, 98304, 224)]
```
